```python
import torch

def _softmax(x, axis=-1):
    return torch.softmax(x, dim=axis)
def _gelu(x):
    return torch.nn.functional.gelu(x, approximate="tanh")
def _silu(x):
    return torch.nn.functional.silu(x)
def _sigmoid(x):
    return torch.sigmoid(x)
def _layernorm(x, axis=-1, eps=1e-5):
    m = x.mean(dim=axis, keepdim=True)
    v = x.var(dim=axis, keepdim=True, unbiased=False)
    return (x - m) / torch.sqrt(v + eps)
def _scatter_add(tgt, idx, src, axis=0):
    return tgt.clone().index_add_(axis, idx, src)
def _segment_sum(src, seg, n):
    out = torch.zeros((n,) + src.shape[1:], dtype=src.dtype)
    return out.index_add_(0, seg, src)
def _pad(x, pw):
    flat = tuple(v for pair in reversed(pw) for v in pair)
    return torch.nn.functional.pad(x, flat)

kernel_name = 'parallel_sum__ssm_conv_s5__mixer_channel_mlp__prompt'

def setup_inputs():

    _w = (lambda a: (lambda t: t.to(torch.bfloat16) if t.is_floating_point() else t)(torch.as_tensor(a)))
    def _A_setup():
        B, S, D = 1, 2048, 576
        P = D
        Lambda_re = -0.5 * (lambda _x: torch.exp(torch.as_tensor(_x)))((lambda *s: torch.randn(*s, dtype=torch.bfloat16) * 0.2)(P))
        Lambda_im = (lambda *s: torch.randn(*s, dtype=torch.bfloat16) * 0.8)(P) * 1.0
        B_re = (lambda *s: torch.randn(*s, dtype=torch.bfloat16) * 0.2)(P, D) * (D ** -0.5)
        B_im = (lambda *s: torch.randn(*s, dtype=torch.bfloat16) * 0.2)(P, D) * (D ** -0.5)
        C_re = (lambda *s: torch.randn(*s, dtype=torch.bfloat16) * 0.2)(D, P) * (P ** -0.5)
        C_im = (lambda *s: torch.randn(*s, dtype=torch.bfloat16) * 0.2)(D, P) * (P ** -0.5)
        log_dt = (lambda *s: torch.randn(*s, dtype=torch.bfloat16) * 0.2)(P) * 0.3 - 2.0
        Dskip = (lambda *s: torch.randn(*s, dtype=torch.bfloat16) * 0.05)(D)
        return {
            "x": _w((lambda *s: torch.randn(*s, dtype=torch.bfloat16) * 0.05)(B, S, D)),
            "Lambda_re": _w(Lambda_re),
            "Lambda_im": _w(Lambda_im),
            "B_re": _w(B_re),
            "B_im": _w(B_im),
            "C_re": _w(C_re),
            "C_im": _w(C_im),
            "log_dt": _w(log_dt),
            "Dskip": _w(Dskip),
        }
    _A_in = _A_setup()

    def _B_setup():
        B, S, D, F = 1, 2048, 576, 4608
        return {
            "x": _w((lambda *s: torch.randn(*s, dtype=torch.bfloat16) * 0.05)(B, S, D)),
            "w1": _w((lambda *s: torch.randn(*s, dtype=torch.bfloat16) * 1.6)(D, F) * (D ** -0.5)),
            "b1": _w((lambda *s: torch.randn(*s, dtype=torch.bfloat16) * 0.8)(F)),
            "w2": _w((lambda *s: torch.randn(*s, dtype=torch.bfloat16) * 0.05)(F, D) * (F ** -0.5)),
            "b2": _w((lambda *s: torch.randn(*s, dtype=torch.bfloat16) * 0.05)(D)),
        }
    _B_in = _B_setup()

    return {
        "A_x": _A_in["x"],
        "A_Lambda_re": _A_in["Lambda_re"],
        "A_Lambda_im": _A_in["Lambda_im"],
        "A_B_re": _A_in["B_re"],
        "A_B_im": _A_in["B_im"],
        "A_C_re": _A_in["C_re"],
        "A_C_im": _A_in["C_im"],
        "A_log_dt": _A_in["log_dt"],
        "A_Dskip": _A_in["Dskip"],
        "B_x": _B_in["x"],
        "B_w1": _B_in["w1"],
        "B_b1": _B_in["b1"],
        "B_w2": _B_in["w2"],
        "B_b2": _B_in["b2"],
    }

def reference(A_x, A_Lambda_re, A_Lambda_im, A_B_re, A_B_im, A_C_re, A_C_im, A_log_dt, A_Dskip, B_x, B_w1, B_b1, B_w2, B_b2):
    def _A_ref(x, Lambda_re, Lambda_im, B_re, B_im, C_re, C_im, log_dt, Dskip):
        Bsz, L, H = x.shape
        Lam = Lambda_re + 1j * Lambda_im
        Bmat = B_re + 1j * B_im
        Cmat = C_re + 1j * C_im
        dt = torch.exp(log_dt)
        Lam_bar = torch.exp(dt * Lam)
        B_bar = ((Lam_bar - 1.0) / Lam)[:, None] * Bmat
        Bu = torch.einsum("bld,pd->blp", x + 0j, B_bar)
        h = torch.zeros_like(Bu[:, 0, :])
        hs = []
        for t in range(L):
            h = Lam_bar[None, :] * h + Bu[:, t, :]
            hs.append(h)
        hseq = torch.stack(hs, 1)
        y = 2.0 * torch.einsum("blp,dp->bld", hseq, Cmat).real + x * Dskip[None, None, :]
        return y

    def _B_ref(x, w1, b1, w2, b2):
        y = _layernorm(x, axis=-1)
        h = _gelu(torch.einsum("bsd,df->bsf", y, w1) + b1)
        return torch.einsum("bsf,fd->bsd", h, w2) + b2

    x = A_x
    xn = _layernorm(x, axis=-1)
    return x + _A_ref(xn, A_Lambda_re, A_Lambda_im, A_B_re, A_B_im, A_C_re, A_C_im, A_log_dt, A_Dskip) + _B_ref(xn, B_w1, B_b1, B_w2, B_b2)
```

```python
HDR = """; @launch grid=({grid},1,1) block=({block},1,1) lds={lds}
.amdgcn_target "amdgcn-amd-amdhsa--gfx950"
.text
.globl mb_kernel
.p2align 8
.type mb_kernel,@function
mb_kernel:
    s_load_dwordx2 s[4:5], s[0:1], 0
    s_load_dwordx2 s[6:7], s[0:1], 8
    s_load_dwordx2 s[24:25], s[0:1], 16
    s_waitcnt lgkmcnt(0)
    s_mov_b32 s8, s4
    s_mov_b32 s9, s5
    s_mov_b32 s10, 0x4000000
    s_mov_b32 s11, 0x20000
    s_mov_b32 s12, s6
    s_mov_b32 s13, s7
    s_mov_b32 s14, 0x100000
    s_mov_b32 s15, 0x20000
    s_mov_b32 s28, s24
    s_mov_b32 s29, s25
    s_mov_b32 s30, 0x10000000
    s_mov_b32 s31, 0x20000
    v_lshrrev_b32 v1, 6, v0
    s_nop 1
    v_readfirstlane_b32 s3, v1
    v_and_b32 v2, 63, v0             ; lane
"""
START = """
    s_barrier
    s_memtime s[16:17]
    s_memrealtime s[20:21]
    s_waitcnt lgkmcnt(0)
"""
END = """
    s_memtime s[18:19]
    s_memrealtime s[22:23]
    s_waitcnt lgkmcnt(0)
    s_sub_u32 s18, s18, s16
    s_sub_u32 s22, s22, s20
    s_mul_i32 s19, s2, {nw}
    s_add_u32 s19, s19, s3
    s_lshl_b32 s19, s19, 3
    v_mov_b32 v3, s19
    v_mov_b32 v4, s18
    v_mov_b32 v5, s22
    v_cmp_eq_u32 vcc, 0, v2
    s_and_saveexec_b64 s[26:27], vcc
    buffer_store_dwordx2 v[4:5], v3, s[12:15], 0 offen
    s_waitcnt vmcnt(0)
    s_endpgm
.section .rodata,"a"
.p2align 6
.amdhsa_kernel mb_kernel
  .amdhsa_next_free_vgpr {vgpr}
  .amdhsa_next_free_sgpr 102
  .amdhsa_accum_offset {accum}
  .amdhsa_group_segment_fixed_size 0
  .amdhsa_kernarg_size 24
  .amdhsa_user_sgpr_count 2
  .amdhsa_user_sgpr_kernarg_segment_ptr 1
  .amdhsa_system_sgpr_workgroup_id_x 1
.end_amdhsa_kernel
"""
def kernel(path, setup, body, grid=256, block=512, lds=0, vgpr=256, accum=256):
    s = HDR.format(grid=grid, block=block, lds=lds) + setup + START + body + END.format(nw=block // 64, vgpr=vgpr, accum=accum)
    open(path, "w").write(s)
```

```python
from mbgen import *
def gen(path, G, KB, st="sc1", ld="sc1", sameline=False, pre=0, warm=None):
    nst = KB // 8
    setup = "    v_lshlrev_b32 v8, 4, v2\n"
    setup += f"    s_mul_i32 s40, s2, {KB*1024}\n    s_mul_i32 s41, s3, {nst*1024}\n    s_add_u32 s40, s40, s41\n"
    for r in range(16, 256): setup += f"    v_mov_b32 v{r}, v0\n"
    lg = G.bit_length() - 1
    setup += f"    s_lshr_b32 s42, s2, {lg}\n    s_and_b32 s43, s2, {G-1}\n"
    setup += f"    s_lshl_b32 s44, s42, {2 if sameline else 8}\n    s_add_u32 s44, s44, 0x80000\n    v_mov_b32 v9, s44\n    v_mov_b32 v10, 1\n"
    def ts(i): return f"    s_memrealtime s[{60+2*i}:{61+2*i}]\n"
    body = ""
    if warm:
        body += "    s_mov_b32 s51, s40\n"
        for i in range(nst):
            if warm == "rd": body += f"    buffer_load_dwordx4 v[20:23], v8, s[28:31], s51 offen\n"
            else: body += f"    buffer_store_dwordx4 v[16:19], v8, s[28:31], s51 offen sc1\n"
            body += "    s_add_u32 s51, s51, 1024\n"
        body += "    s_waitcnt vmcnt(0)\n" + "    s_sleep 127\n" * 3 + "    s_barrier\n"
    body += ts(0)
    for i in range(nst):
        body += f"    buffer_store_dwordx4 v[16:19], v8, s[28:31], s40 offen {st}\n    s_add_u32 s40, s40, 1024\n"
        if pre: body += f"    s_sleep {pre}\n"
    body += ts(1) + "    s_waitcnt vmcnt(0)\n" + ts(2) + "    s_barrier\n"
    body += "    s_cmp_lg_u32 s3, 0\n    s_cbranch_scc1 LW\n"
    body += "    v_cmp_eq_u32 vcc, 0, v2\n    s_and_saveexec_b64 s[26:27], vcc\n"
    body += "    buffer_atomic_add v10, v9, s[12:15], 0 offen\n"
    body += f"LPOLL:\n    buffer_load_dword v11, v9, s[12:15], 0 offen sc1\n    s_waitcnt vmcnt(0)\n    v_readfirstlane_b32 s45, v11\n    s_cmp_lt_u32 s45, {G}\n    s_cbranch_scc1 LPOLL\n"
    body += "    s_mov_b64 exec, s[26:27]\nLW:\n    s_barrier\n" + ts(3)
    per = KB // G
    tot = KB
    body += f"    s_mul_i32 s46, s42, {G*KB*1024}\n    s_mul_i32 s47, s43, {per*1024}\n    s_add_u32 s46, s46, s47\n"
    ppw = G // 8
    body += f"    s_mul_i32 s47, s3, {ppw*KB*1024}\n    s_add_u32 s46, s46, s47\n"
    n = 0
    for p in range(ppw):
        for q in range(per):
            r = 32 + 4 * n; n += 1
            body += f"    s_add_u32 s48, s46, {p*KB*1024 + q*1024}\n    buffer_load_dwordx4 v[{r}:{r+3}], v8, s[28:31], s48 offen {ld}\n"
    body += "    s_waitcnt vmcnt(0)\n" + ts(4)
    body += f"    s_mul_i32 s40, s2, 18432\n    s_add_u32 s40, s40, 0x8000000\n    s_mul_i32 s41, s3, 2048\n    s_add_u32 s40, s40, s41\n"
    body += "    buffer_store_dwordx4 v[32:35], v8, s[28:31], s40 offen\n    buffer_store_dwordx4 v[36:39], v8, s[28:31], s40 offen offset:1024\n    s_waitcnt vmcnt(0)\n" + ts(5)
    body += "    s_waitcnt lgkmcnt(0)\n"
    for i in range(6):
        body += f"    v_writelane_b32 v12, s{60+2*i}, {i}\n"
    body += f"    s_mul_i32 s41, s2, 8\n    s_add_u32 s41, s41, s3\n    s_lshl_b32 s41, s41, 5\n    s_add_u32 s41, s41, 0x40000\n    v_lshlrev_b32 v13, 2, v2\n    v_cmp_gt_u32 vcc, 8, v2\n    s_and_saveexec_b64 s[26:27], vcc\n    buffer_store_dword v12, v13, s[12:15], s41 offen\n    s_mov_b64 exec, s[26:27]\n"
    kernel(path, setup, body, block=512, lds=100*1024)
    return path
F = []
F.append(gen("e2_base.s", 16, 144))
F.append(gen("e2_rd.s", 16, 144, warm="rd"))
F.append(gen("e2_wr.s", 16, 144, warm="wr"))
F.append(gen("e2_base_plain.s", 16, 144, st=""))
open("files_red2.txt", "w").write(" ".join(F))
```
